```python
import torch

def _softmax(x, axis=-1):
    return torch.softmax(x, dim=axis)
def _gelu(x):
    return torch.nn.functional.gelu(x, approximate="tanh")
def _silu(x):
    return torch.nn.functional.silu(x)
def _sigmoid(x):
    return torch.sigmoid(x)
def _layernorm(x, axis=-1, eps=1e-5):
    m = x.mean(dim=axis, keepdim=True)
    v = x.var(dim=axis, keepdim=True, unbiased=False)
    return (x - m) / torch.sqrt(v + eps)
def _scatter_add(tgt, idx, src, axis=0):
    return tgt.clone().index_add_(axis, idx, src)
def _segment_sum(src, seg, n):
    out = torch.zeros((n,) + src.shape[1:], dtype=src.dtype)
    return out.index_add_(0, seg, src)
def _pad(x, pw):
    flat = tuple(v for pair in reversed(pw) for v in pair)
    return torch.nn.functional.pad(x, flat)

kernel_name = 'standalone__mha_block_cached__near_ridge'

def setup_inputs():

    _w = (lambda a: (lambda t: t.to(torch.bfloat16) if t.is_floating_point() else t)(torch.as_tensor(a)))
    B, Sq, D = 8, 128, 576
    H, Sk, Dh = 32, 512, 128
    return {
        "x": _w((lambda *s: torch.randn(*s, dtype=torch.bfloat16) * 0.8)(B, Sq, D)),
        "k_cache": _w((lambda *s: torch.randn(*s, dtype=torch.bfloat16) * 0.8)(B, H, Sk, Dh)),
        "v_cache": _w((lambda *s: torch.randn(*s, dtype=torch.bfloat16) * 0.05)(B, H, Sk, Dh)),
        "wq": _w((lambda *s: torch.randn(*s, dtype=torch.bfloat16) * 0.8)(D, H * Dh) * (D ** -0.5)),
        "wo": _w((lambda *s: torch.randn(*s, dtype=torch.bfloat16) * 0.05)(H * Dh, D) * ((H * Dh) ** -0.5)),
    }

def reference(x, k_cache, v_cache, wq, wo):
    B, Sq, D = x.shape
    H, Dh = 32, 128
    q = (lambda x, *d: x.permute(*d))((x @ wq).reshape(B, Sq, H, Dh), 0, 2, 1, 3)
    scores = torch.einsum("bhqd,bhkd->bhqk", q, k_cache) * (Dh ** -0.5)
    p = _softmax(scores, axis=-1)
    o = torch.einsum("bhqk,bhkd->bhqd", p, v_cache)
    return (lambda x, *d: x.permute(*d))(o, 0, 2, 1, 3).reshape(B, Sq, H * Dh) @ wo
```

```python
NAME = "standalone__mha_block_cached__near_ridge"

class A:
    def __init__(self):
        self.l = []
        self.uid = 0
    def __call__(self, s=""):
        for line in s.split("\n"):
            self.l.append(line)
    def c(self, s):
        self.l.append("    ; " + s)
    def label(self, s):
        self.l.append(s + ":")
    def newlabel(self, p="L"):
        self.uid += 1
        return f"{p}_{self.uid}"
    def text(self):
        return "\n".join(self.l) + "\n"

HEADER_COMMENT = """; Kernarg layout for this problem (64 bytes, ptrs only, base s[0:1]):
"""

def kernel_begin(a, label):
    a(".globl " + label)
    a(".p2align 8")
    a(f".type {label},@function")
    a.label(label)

def kd(a, label, vgpr, accum, sgpr=102, extra=""):
    a(".p2align 6")
    a(f".amdhsa_kernel {label}")
    a(f"  .amdhsa_next_free_vgpr {vgpr}")
    a(f"  .amdhsa_next_free_sgpr {sgpr}")
    a(f"  .amdhsa_accum_offset {accum}")
    a("  .amdhsa_group_segment_fixed_size 0")
    a("  .amdhsa_kernarg_size 64")
    a("  .amdhsa_user_sgpr_count 2")
    a("  .amdhsa_user_sgpr_kernarg_segment_ptr 1")
    a("  .amdhsa_system_sgpr_workgroup_id_x 1")
    if extra:
        a(extra)
    a(".end_amdhsa_kernel")

def single(body, grid, block, lds, vgpr=256, accum=256, sgpr=102, extra=""):
    a = A()
    a(HEADER_COMMENT.rstrip("\n"))
    a(f"; @launch grid=({grid},1,1) block=({block},1,1) lds={lds}")
    a('.amdgcn_target "amdgcn-amd-amdhsa--gfx950"')
    a(".text")
    kernel_begin(a, NAME + "_kernel")
    a(body)
    a('.section .rodata,"a"')
    kd(a, NAME + "_kernel", vgpr, accum, sgpr, extra)
    return a.text()
```

```python
import re

REG_RE = re.compile(r'^(-|\|)?([vas])(?:(\d+)|\[(\d+):(\d+)\])\|?$')

def regs_of(tok):
    tok = tok.strip()
    if tok in ("vcc",): return ["vcc"]
    if tok in ("exec",): return ["exec"]
    if tok in ("m0",): return ["m0"]
    if tok in ("vcc_lo", "vcc_hi"): return ["vcc"]
    m = REG_RE.match(tok)
    if not m: return []
    f = m.group(2)
    if m.group(3) is not None:
        return [f + m.group(3)]
    return [f + str(i) for i in range(int(m.group(4)), int(m.group(5)) + 1)]

def split_ops(s):
    ops, depth, cur = [], 0, ""
    for ch in s + ",":
        if ch in "[(": depth += 1
        elif ch in "])": depth -= 1
        if ch == "," and depth == 0:
            ops.append(cur.strip()); cur = ""
        else:
            cur += ch
    return [o for o in ops if o]

TRANS = ("v_exp_f32", "v_log_f32", "v_rcp_f32", "v_rsq_f32", "v_sqrt_f32", "v_sin_f32", "v_cos_f32")

class Ins:
    __slots__ = ("text", "mn", "defs", "uses", "kind", "passes", "srcc", "mods", "tag")
    def __init__(self, text, tag=None):
        self.text = text; self.tag = tag
        t = text.split(";")[0].strip()
        parts = t.split(None, 1)
        self.mn = mn = parts[0]
        rest = parts[1] if len(parts) > 1 else ""
        raw = split_ops(rest)
        ops = [o.split()[0] if o.split() else o for o in raw]
        mods = set()
        for o in raw:
            for w in o.split()[1:]:
                mods.add(w.split(":")[0])
        self.mods = mods
        self.defs, self.uses, self.srcc, self.passes = [], [], [], 0
        R = regs_of
        if mn.startswith("v_mfma"):
            self.kind = "mfma"
            self.passes = 8 if "32x32x16" in mn else 4
            self.defs = R(ops[0]); self.uses = R(ops[1]) + R(ops[2]) + R(ops[3]); self.srcc = R(ops[3])
        elif mn.startswith("ds_read"):
            self.kind = "ds"; self.defs = R(ops[0]); self.uses = R(ops[1])
        elif mn.startswith("ds_write"):
            self.kind = "ds"; self.uses = [r for o in ops for r in R(o)]
        elif mn.startswith("buffer_load"):
            self.kind = "vm"
            if "lds" in mods:
                self.uses = [r for o in ops for r in R(o)] + ["m0"]
            else:
                self.defs = R(ops[0]); self.uses = [r for o in ops[1:] for r in R(o)]
        elif mn.startswith("buffer_store"):
            self.kind = "vm"; self.uses = [r for o in ops for r in R(o)]
        elif mn.startswith("global_load"):
            self.kind = "vm"; self.defs = R(ops[0]); self.uses = [r for o in ops[1:] for r in R(o)]
        elif mn.startswith("global_store"):
            self.kind = "vm"; self.uses = [r for o in ops for r in R(o)]
        elif mn.startswith("global_atomic"):
            self.kind = "vm"
            if "sc0" in mods:
                self.defs = R(ops[0]); self.uses = [r for o in ops[1:] for r in R(o)]
            else:
                self.uses = [r for o in ops for r in R(o)]
        elif mn.startswith("buffer_inv") or mn.startswith("buffer_wbl2"):
            self.kind = "vm"
        elif mn.startswith("v_"):
            self.kind = "valu"
            if mn.startswith("v_cmp"):
                self.defs = R(ops[0]); self.uses = [r for o in ops[1:] for r in R(o)]
            elif mn.startswith("v_permlane") and "swap" in mn:
                self.defs = R(ops[0]) + R(ops[1]); self.uses = R(ops[0]) + R(ops[1])
            elif mn.startswith("v_readfirstlane") or mn.startswith("v_readlane"):
                self.defs = R(ops[0]); self.uses = [r for o in ops[1:] for r in R(o)]
            elif mn.startswith("v_add_co") or mn.startswith("v_addc_co") or mn.startswith("v_sub_co"):
                self.defs = R(ops[0]) + R(ops[1]); self.uses = [r for o in ops[2:] for r in R(o)]
            else:
                self.defs = R(ops[0]); self.uses = [r for o in ops[1:] for r in R(o)]
                if mn.startswith("v_fmac") or mn.startswith("v_writelane") or mn.startswith("v_pk_fmac"):
                    self.uses += R(ops[0])
                if mn.startswith("v_cndmask") and len(ops) == 3:
                    self.uses.append("vcc")
        elif mn.startswith("s_"):
            self.kind = "salu"
            if mn in ("s_waitcnt", "s_nop", "s_barrier", "s_endpgm", "s_sleep", "s_setprio", "s_branch") or mn.startswith("s_cbranch"):
                pass
            elif mn.startswith("s_cmp") or mn.startswith("s_bitcmp"):
                self.uses = [r for o in ops for r in R(o)]
            elif mn.startswith("s_load") or mn.startswith("s_mem"):
                self.kind = "smem"; self.defs = R(ops[0]); self.uses = [r for o in ops[1:] for r in R(o)]
            else:
                self.defs = R(ops[0]); self.uses = [r for o in ops[1:] for r in R(o)]
                if "saveexec" in mn: self.defs.append("exec"); self.uses.append("exec")
        else:
            raise ValueError("unknown instr " + text)

class Prog:
    def __init__(self):
        self.out = []
        self.hist = []
        self.state = 0
        self.ds = []
        self.vm = []
        self.uid = 0
        self.nops = 0
        self.ninstr = 0
    def newlabel(self, p="L"):
        self.uid += 1
        return f"{p}_{self.uid}"
    def raw(self, text):
        self.out.append(text)
    def c(self, text):
        self.out.append("    ; " + text)
    def label(self, name, reset=True):
        self.out.append(name + ":")
    def _emit(self, text):
        self.out.append("    " + text); self.state += 1; self.ninstr += 1
    def nop(self, n):
        while n > 0:
            k = min(n, 16)
            self.out.append(f"    s_nop {k-1}"); self.state += k; n -= k; self.nops += k; self.ninstr += 1
    def wait_lgkm(self, n=0):
        if len(self.ds) > n:
            self._emit(f"s_waitcnt lgkmcnt({n})"); self.ds = self.ds[len(self.ds) - n:] if n else []
    def wait_vm(self, n=0, force=False):
        if len(self.vm) > n or force:
            self._emit(f"s_waitcnt vmcnt({n})"); self.vm = self.vm[len(self.vm) - n:] if n else []
    def wait_all(self):
        self._emit("s_waitcnt vmcnt(0) lgkmcnt(0)"); self.vm = []; self.ds = []
    def wait_tag(self, tag):
        idx = [i for i, (d, t) in enumerate(self.vm) if t == tag]
        if idx:
            self.wait_vm(len(self.vm) - 1 - idx[-1])
    def snapshot(self):
        return (list(self.ds), list(self.vm))
    def restore(self, snap):
        self.ds, self.vm = list(snap[0]), list(snap[1])
    def untracked(self, text):
        snap = self.snapshot()
        self(text)
        self.restore(snap)
    def barrier(self):
        self._emit("s_barrier")
    def __call__(self, text, tag=None):
        for line in text.split("\n"):
            line = line.strip()
            if not line: continue
            if line.startswith(";"):
                self.c(line[1:].strip()); continue
            if line.endswith(":"):
                self.label(line[:-1]); continue
            self.ins(Ins(line, tag))
    def ins(self, I):
        touched = set(I.defs) | set(I.uses)
        need = -1
        for i, d in enumerate(self.ds):
            if d & touched: need = i
        if need >= 0: self.wait_lgkm(len(self.ds) - 1 - need)
        need = -1
        for i, (d, t) in enumerate(self.vm):
            if d & touched: need = i
        if need >= 0: self.wait_vm(len(self.vm) - 1 - need)
        if I.kind == "ds" and len(self.ds) >= 15: self.wait_lgkm(14)
        if I.kind == "vm" and len(self.vm) >= 63: self.wait_vm(62)
        if I.kind == "smem":
            pass
        req = 0
        D, U = set(I.defs), set(I.uses)
        for (P, st) in reversed(self.hist):
            dist = self.state - st - 1
            if dist > 20: break
            n = self.hazard(P, I, D, U)
            if n > dist: req = max(req, n - dist)
        if req > 0: self.nop(req)
        self.out.append("    " + I.text); self.ninstr += 1
        self.hist.append((I, self.state)); self.state += 1
        if len(self.hist) > 64: self.hist = self.hist[-40:]
        if I.kind == "ds": self.ds.append(set(I.defs))
        if I.kind == "vm": self.vm.append((set(I.defs), I.tag))
    @staticmethod
    def hazard(P, I, D, U):
        PD = set(P.defs)
        n = 0
        isv = lambda s: {r for r in s if r[0] in "va" and r != "vcc"}
        iss = lambda s: {r for r in s if r[0] == "s" or r == "vcc"}
        if P.kind == "valu":
            w = isv(PD)
            if I.kind == "mfma" and (w & U): n = max(n, 2)
            if I.kind == "valu":
                if P.mn.startswith(TRANS) and not I.mn.startswith(TRANS) and (w & (U | D)): n = max(n, 1)
                if P.mn.startswith(TRANS) and I.mn.startswith(TRANS) and (w & U): n = max(n, 1)
                if I.mn.startswith("v_permlane") and (w & U): n = max(n, 2)
                if (I.mn.startswith("v_readfirstlane") or I.mn.startswith("v_readlane")) and (w & U): n = max(n, 1)
                if "dpp" in I.mn or "row_shr" in I.mods or "quad_perm" in I.mods:
                    if w & U: n = max(n, 2)
                sw = iss(PD)
                if sw & U: n = max(n, 4 if I.mn.startswith(("v_readlane", "v_writelane")) else 2)
            sw = iss(PD)
            if I.kind == "vm" and (sw & U): n = max(n, 5)
            if I.kind == "salu" and (sw & U): n = max(n, 4)
        if P.kind == "mfma":
            lat = 12 if P.passes == 8 else 8
            if I.kind == "mfma":
                ab = U - set(I.srcc)
                if PD & ab: n = max(n, lat)
                ov = PD & set(I.srcc)
                if ov and not (set(I.srcc) == PD and I.passes == P.passes): n = max(n, 10 if P.passes == 8 else 6)
                if (PD & D) and not (set(I.srcc) == PD):
                    n = max(n, lat)
            elif I.kind in ("valu", "vm", "ds"):
                if PD & (U | D): n = max(n, lat)
                if I.kind == "valu" and (set(P.srcc) & D): n = max(n, 7 if P.passes == 8 else 3)
        if P.kind == "salu" and "m0" in PD and I.kind == "vm" and "m0" in I.uses: n = max(n, 1)
        if P.kind == "vm" and P.mn.endswith(("x4", "x3")) and "store" in P.mn and I.kind == "valu":
            if isv(set(P.uses)) & D: n = max(n, 2)
        if P.kind == "vm" and P.mn.endswith(("x4", "x3")) and "store" in P.mn and I.kind in ("ds", "vm"):
            if isv(set(P.uses)) & D: n = max(n, 1)
        return n
    def text(self):
        return "\n".join(self.out) + "\n"
```

```python
import sys, math, struct
sys.path.insert(0, "tools")
from ir import Prog
from asmgen import HEADER_COMMENT, NAME

def f32hex(x):
    return "0x%08x" % struct.unpack("<I", struct.pack("<f", x))[0]

S_PTR = 4
sX_, sK_, sV_, sWQ_, sWO_, sOUT_, sDBG_, sWS_ = 4, 6, 8, 10, 12, 14, 16, 18
sW, sXC, sJ, sB, sH, sC = 20, 21, 22, 23, 24, 25
SRD_X, SRD_W, SRD_K, SRD_V, SRD_WO, SRD_O, SRD_P, SRD_OUT = 28, 32, 36, 40, 44, 48, 52, 56
sCC = 60
sTC = 62
sXoff, sWoff = 63, 64
sT0, sT1, sT2, sT3 = 65, 66, 67, 68
sNonce = 70
sEX = 72
sW4096 = 74
sKVoff = 75
sCnt = 76
sWOoff = 77
sW9216 = 78
sStamp = 80

def srd(n): return f"s[{n}:{n+3}]"

vTid, vLane = 0, 1
vT = list(range(2, 10))
vXd = list(range(10, 14)); vWd = list(range(14, 18)); vKd = list(range(18, 22)); vVd = 22
vWOd = list(range(23, 32))
vXr = list(range(32, 36)); vWr = list(range(36, 40)); vKr = list(range(40, 48)); vVr = list(range(48, 52))
vM, vMT, vNeg, vL0, vL1, vTm, vTm2 = 52, 53, 54, 56, 58, 60, 61
vWOr = [62, 63, 2, 3]
FR0 = 64; NFR = 8
XF0 = 96; NXF = 3
vQ = 108
vS = 140
vP = 172
vO = 188
vACC = 108
vPK = 188

LDS_BYTES = 163840
SLOT = 16384
def slot_of(u): return (u + 6) % 10

WS_O = 0
WS_P = 0x800000
WS_F1 = 0x2000000
WS_F2 = 0x2010000
WS_DBG = 0x3000000

def vr(b, n): return f"v[{b}:{b+n-1}]" if n > 1 else f"v{b}"
def ar(b, n): return f"a[{b}:{b+n-1}]" if n > 1 else f"a{b}"

class Cfg:
    T = 8.0
    LA = 4
    fp32_partials = False
    dbg_q = False
    stop_after = None
    stamps = False
    st = "sc1"
    ld = "sc1"
    kvnt = True
    D2 = 3

def gen(cfg):
    p = Prog()
    stamp_idx = [0]
    def stamp(name):
        if cfg.stamps:
            i = stamp_idx[0]; stamp_idx[0] += 1
            assert i < 10
            p(f"s_memrealtime s[{sStamp+2*i}:{sStamp+2*i+1}]")
            stamp_names.append(name)
    stamp_names = []

    p(f"s_cmp_ge_u32 s2, 256")
    p(f"s_cbranch_scc1 L_done")
    p(f"s_load_dwordx16 s[4:19], s[0:1], 0")
    stamp("start")
    p(f"v_and_b32 v{vLane}, 63, v0")
    p(f"v_lshrrev_b32 v{vT[0]}, 6, v0")
    p(f"s_and_b32 s{sXC}, s2, 7")
    p(f"v_readfirstlane_b32 s{sW}, v{vT[0]}")
    p(f"s_lshr_b32 s{sT0}, s2, 3")
    p(f"s_and_b32 s{sJ}, s{sT0}, 3")
    p(f"s_lshr_b32 s{sB}, s{sT0}, 2")
    p(f"s_lshl_b32 s{sH}, s{sXC}, 2")
    p(f"s_add_u32 s{sH}, s{sH}, s{sJ}")
    p(f"s_add_u32 s{sC}, s{sB}, s{sJ}")
    p(f"s_cmp_ge_u32 s{sC}, 9")
    p(f"s_cselect_b32 s{sT0}, 9, 0")
    p(f"s_sub_u32 s{sC}, s{sC}, s{sT0}")
    p(f"s_lshl_b32 s{sW4096}, s{sW}, 12")
    L16, l15, L8, l7, t0, t1 = vT[0], vT[1], vT[2], vT[3], vT[4], vT[5]
    p(f"v_lshrrev_b32 v{L16}, 4, v{vLane}")
    p(f"v_and_b32 v{l15}, 15, v{vLane}")
    p(f"v_lshrrev_b32 v{L8}, 3, v{vLane}")
    p(f"v_and_b32 v{l7}, 7, v{vLane}")
    for k in range(4):
        p(f"v_add_u32 v{t0}, {4*k}, v{L16}")
        p(f"v_and_b32 v{t0}, 7, v{t0}")
        p(f"v_xor_b32 v{t0}, v{t0}, v{l7}")
        p(f"v_lshlrev_b32 v{t0}, 4, v{t0}")
        p(f"v_add_u32 v{t1}, {8*k}, v{L8}")
        p(f"v_mul_u32_u24 v{t1}, 1152, v{t1}")
        p(f"v_add_u32 v{vXd[k]}, v{t0}, v{t1}")
        if k: p(f"v_subrev_u32 v{vXd[k]}, {1024*k}, v{vXd[k]}")
    sw = vT[6]
    p(f"v_lshlrev_b32 v{sw}, 2, v{L16}")
    p(f"v_xor_b32 v{sw}, v{sw}, v{l15}")
    p(f"v_lshlrev_b32 v{sw}, 4, v{sw}")
    for k in range(4):
        p(f"v_add_u32 v{t1}, {4*k}, v{L16}")
        p(f"v_lshlrev_b32 v{t1}, 13, v{t1}")
        p(f"v_add_u32 v{vWd[k]}, v{t1}, v{sw}")
        if k: p(f"v_subrev_u32 v{vWd[k]}, {1024*k}, v{vWd[k]}")
    p(f"v_lshlrev_b32 v{t1}, 8, v{L16}")
    p(f"v_add_u32 v{vVd}, v{t1}, v{sw}")
    for k in range(4):
        p(f"v_add_u32 v{t0}, {4*k}, v{L16}")
        p(f"v_xor_b32 v{t0}, v{t0}, v{l15}")
        p(f"v_lshlrev_b32 v{t0}, 4, v{t0}")
        p(f"v_add_u32 v{vKd[k]}, v{t0}, v{t1}")
    p("s_waitcnt lgkmcnt(0)")
    def mk_srd(d, base, off_expr_lines, size):
        for l in off_expr_lines: p(l)
        p(f"s_add_u32 s{d}, s{base}, s{sT0}")
        p(f"s_addc_u32 s{d+1}, s{base+1}, 0")
        if isinstance(size, int): p(f"s_mov_b32 s{d+2}, {size}")
        else:
            for l in size: p(l)
        p(f"s_mov_b32 s{d+3}, 0x20000")
    mk_srd(SRD_X, sX_, [f"s_mul_i32 s{sT0}, s{sB}, 147456"], 147456)
    mk_srd(SRD_W, sWQ_, [f"s_lshl_b32 s{sT0}, s{sH}, 8"], [f"s_sub_u32 s{SRD_W+2}, 4718592, s{sT0}"])
    p(f"s_mul_i32 s{sT1}, s{sW}, 36864")
    p(f"s_lshl_b32 s{sT2}, s{sW}, 17")

    dma_count = {}
    def set_chunk_offsets():
        p(f"s_lshl_b32 s{sXoff}, s{sC}, 7")
        p(f"s_add_u32 s{sXoff}, s{sXoff}, s{sT1}")
        p(f"s_lshl_b32 s{sWoff}, s{sC}, 19")
        p(f"s_add_u32 s{sWoff}, s{sWoff}, s{sT2}")
    def next_chunk():
        p(f"s_add_u32 s{sC}, s{sC}, 1")
        p(f"s_cmp_ge_u32 s{sC}, 9")
        p(f"s_cselect_b32 s{sC}, 0, s{sC}")
    def dma_group(kind, u, idx=None):
        L = []
        base = slot_of(u) * SLOT if u is not None else None
        nt = " nt" if cfg.kvnt else ""
        if kind == "X":
            for k in range(4):
                def f(k=k):
                    if k == 0:
                        set_chunk_offsets()
                        p(f"s_add_u32 m0, s{sW4096}, {base}")
                    p(f"buffer_load_dwordx4 v{vXd[k]}, {srd(SRD_X)}, s{sXoff} offen offset:{1024*k} lds", tag=("u", u))
                L.append(f)
        elif kind == "W":
            for k in range(4):
                def f(k=k):
                    if k == 0:
                        p(f"s_add_u32 m0, s{sW4096}, {base}")
                    p(f"buffer_load_dwordx4 v{vWd[k]}, {srd(SRD_W)}, s{sWoff} offen offset:{1024*k} lds", tag=("u", u))
                    if k == 3: next_chunk()
                L.append(f)
        elif kind in ("K", "V"):
            t = idx
            for k in range(4):
                def f(k=k):
                    if k == 0:
                        p(f"s_add_u32 s{sKVoff}, s{sW4096}, {t*16384}")
                        p(f"s_add_u32 m0, s{sW4096}, {base}")
                    if kind == "K":
                        p(f"buffer_load_dwordx4 v{vKd[k]}, {srd(SRD_K)}, s{sKVoff} offen offset:{1024*k}{nt} lds", tag=("u", u))
                    else:
                        p(f"buffer_load_dwordx4 v{vVd}, {srd(SRD_V)}, s{sKVoff} offen offset:{1024*k}{nt} lds", tag=("u", u))
                L.append(f)
        elif kind == "O":
            pos, rs = idx
            for r in rs:
                def f(r=r, first=(r == rs[0])):
                    if first:
                        p(f"s_add_u32 s{sWOoff}, s{sJ}, {pos}")
                        p(f"s_and_b32 s{sWOoff}, s{sWOoff}, 3")
                        p(f"s_mul_i32 s{sWOoff}, s{sWOoff}, 147456")
                        p(f"s_add_u32 s{sWOoff}, s{sWOoff}, s{sT1}")
                    if first or r % 4 == 0:
                        p(f"s_add_u32 m0, s{sW9216}, {36864*pos + 4096*(r//4)}")
                    p(f"buffer_load_dwordx4 v{vWOd[r]}, {srd(SRD_WO)}, s{sWOoff} offen offset:{1024*(r%4)} lds", tag=("wo", pos))
                L.append(f)
        return L
    def use_kind(u):
        if u < 18: return ("X" if u % 2 == 0 else "W", u // 2)
        return ("K" if u % 2 == 0 else "V", (u - 18) // 2)
    def dma_use(u):
        k, i = use_kind(u)
        return dma_group(k, u, i)

    for u in range(4):
        for f in dma_use(u): f()
    mk_srd(SRD_K, sK_, [f"s_lshl_b32 s{sT0}, s{sB}, 5", f"s_add_u32 s{sT0}, s{sT0}, s{sH}", f"s_lshl_b32 s{sT0}, s{sT0}, 17"], 131072)
    p(f"s_add_u32 s{SRD_V}, s{sV_}, s{sT0}"); p(f"s_addc_u32 s{SRD_V+1}, s{sV_+1}, 0"); p(f"s_mov_b32 s{SRD_V+2}, 131072"); p(f"s_mov_b32 s{SRD_V+3}, 0x20000")
    mk_srd(SRD_WO, sWO_, [f"s_mul_i32 s{sT0}, s{sXC}, 589824", f"s_mul_i32 s{sT3}, s{sJ}, 288", f"s_add_u32 s{sT0}, s{sT0}, s{sT3}"],
           [f"s_sub_u32 s{SRD_WO+2}, 4718592, s{sT0}"])
    p(f"s_mul_i32 s{sW9216}, s{sW}, 9216")
    mk_srd(SRD_O, sWS_, [f"s_lshl_b32 s{sT0}, s{sB}, 3", f"s_add_u32 s{sT0}, s{sT0}, s{sXC}", f"s_lshl_b32 s{sT0}, s{sT0}, 2",
                         f"s_add_u32 s{sT0}, s{sT0}, s{sW}", f"s_lshl_b32 s{sT0}, s{sT0}, 15"], 32768)
    c = (128 ** -0.5) * math.log2(math.e)
    p(f"s_mov_b32 s{sCC}, {f32hex(c)}"); p(f"s_mov_b32 s{sCC+1}, {f32hex(c)}")
    p(f"s_mov_b32 s{sTC}, {f32hex(cfg.T / c)}")
    for r in range(9):
        p(f"v_add_u32 v{t0}, {64*r}, v{vLane}")
        p(f"v_mul_u32_u24 v{t1}, 3641, v{t0}")
        p(f"v_lshrrev_b32 v{t1}, 16, v{t1}")
        p(f"v_mul_u32_u24 v{sw}, 18, v{t1}")
        p(f"v_sub_u32 v{t0}, v{t0}, v{sw}")
        p(f"v_lshlrev_b32 v{t0}, 4, v{t0}")
        p(f"v_mul_u32_u24 v{t1}, 1152, v{t1}")
        p(f"v_add_u32 v{vWOd[r]}, v{t0}, v{t1}")
        if r % 4: p(f"v_subrev_u32 v{vWOd[r]}, {1024*(r%4)}, v{vWOd[r]}")
    q, hl, b4, r4, c4 = vT[0], vT[1], vT[2], vT[3], vT[6]
    p(f"v_and_b32 v{q}, 31, v{vLane}")
    p(f"v_lshrrev_b32 v{hl}, 5, v{vLane}")
    p(f"v_bfe_u32 v{b4}, v{vLane}, 4, 1")
    p(f"v_bfe_u32 v{r4}, v{vLane}, 2, 2")
    p(f"v_and_b32 v{c4}, 3, v{vLane}")
    p(f"v_bfe_u32 v{t0}, v{q}, 1, 3")
    p(f"v_xor_b32 v{t0}, v{t0}, v{hl}")
    p(f"v_lshlrev_b32 v{t0}, 4, v{t0}")
    p(f"v_lshlrev_b32 v{t1}, 7, v{q}")
    p(f"v_add_u32 v{t1}, s{sW4096}, v{t1}")
    p(f"v_add_u32 v{t1}, {slot_of(0)*SLOT}, v{t1}")
    for s in range(4):
        p(f"v_xor_b32 v{vXr[s]}, {32*s}, v{t0}")
        p(f"v_add_u32 v{vXr[s]}, v{vXr[s]}, v{t1}")
    p(f"v_lshlrev_b32 v{t1}, 3, v{hl}"); p(f"v_add_u32 v{t1}, v{t1}, v{r4}"); p(f"v_lshlrev_b32 v{t1}, 8, v{t1}")
    p(f"v_lshlrev_b32 v{t0}, 5, v{b4}"); p(f"v_add_u32 v{t1}, v{t1}, v{t0}")
    p(f"v_and_b32 v{t0}, 1, v{c4}"); p(f"v_lshlrev_b32 v{t0}, 4, v{t0}"); p(f"v_add_u32 v{t1}, v{t1}, v{t0}")
    p(f"v_lshrrev_b32 v{t0}, 1, v{c4}"); p(f"v_lshlrev_b32 v{t0}, 3, v{t0}"); p(f"v_add_u32 v{t1}, v{t1}, v{t0}")
    p(f"v_add_u32 v{t1}, {slot_of(1)*SLOT}, v{t1}")
    for db in range(4):
        p(f"v_xor_b32 v{t0}, {db}, v{r4}"); p(f"v_lshlrev_b32 v{t0}, 6, v{t0}"); p(f"v_add_u32 v{vWr[db]}, v{t0}, v{t1}")
    p(f"v_lshlrev_b32 v{t1}, 2, v{hl}"); p(f"v_add_u32 v{t1}, v{t1}, v{r4}"); p(f"v_lshlrev_b32 v{t1}, 8, v{t1}")
    p(f"v_lshlrev_b32 v{t0}, 5, v{b4}"); p(f"v_add_u32 v{t1}, v{t1}, v{t0}")
    p(f"v_lshlrev_b32 v{t0}, 3, v{c4}"); p(f"v_add_u32 v{t1}, v{t1}, v{t0}")
    p(f"v_add_u32 v{t1}, {slot_of(19)*SLOT}, v{t1}")
    for db in range(4):
        p(f"v_xor_b32 v{t0}, {db}, v{r4}"); p(f"v_lshlrev_b32 v{t0}, 6, v{t0}"); p(f"v_add_u32 v{vVr[db]}, v{t0}, v{t1}")
    p(f"v_and_b32 v{t0}, 15, v{q}"); p(f"v_xor_b32 v{t0}, v{t0}, v{hl}"); p(f"v_lshlrev_b32 v{t0}, 4, v{t0}")
    p(f"v_lshlrev_b32 v{t1}, 8, v{q}"); p(f"v_add_u32 v{t1}, {slot_of(18)*SLOT}, v{t1}")
    for s in range(8):
        p(f"v_xor_b32 v{vKr[s]}, {32*s}, v{t0}"); p(f"v_add_u32 v{vKr[s]}, v{vKr[s]}, v{t1}")
    p(f"s_or_b32 s{sT0}, s2, s{sW}")
    p(f"s_cmp_lg_u32 s{sT0}, 0")
    p(f"s_cbranch_scc1 L_nononce")
    p(f"s_memrealtime s[{sT0+1}:{sT0+2}]" if False else f"s_memrealtime s[66:67]")
    p("s_waitcnt lgkmcnt(0)")
    p(f"s_or_b32 s66, s66, 1")
    p(f"v_mov_b32 v{t0}, s66")
    p(f"v_mov_b32 v{t1}, 0")
    p.untracked(f"global_store_dword v{t1}, v{t0}, s[{sDBG_}:{sDBG_+1}] sc0 sc1")
    p("L_nononce:")
    p(f"s_mul_i32 s{sT1}, s{sW}, 36864")
    p(f"s_lshl_b32 s{sT2}, s{sW}, 17")

    class Op:
        def __init__(self, reads, mfma, pre=None, post=None):
            self.reads, self.mfma, self.pre, self.post = reads, mfma, pre or [], post or []
    def run_ops(ops, LA, fillers=None):
        fillers = fillers or {}
        n = len(ops)
        for i in range(-LA, n):
            j = i + LA
            if j < n:
                for f in ops[j].pre: f()
                for r in ops[j].reads: p(r)
            if i >= 0:
                for m in ops[i].mfma: p(m)
                for f in ops[i].post: f()
                for f in fillers.get(i, []): f()
    fr_ctr = [0]
    def newfrag():
        b = FR0 + 4 * (fr_ctr[0] % NFR); fr_ctr[0] += 1; return b
    def spread(fl, start, end, fillers):
        n = len(fl)
        for i, f in enumerate(fl):
            pos = start + (i * (end - start)) // max(n, 1)
            fillers.setdefault(pos, []).append(f)
    def addr_shift(regs, u_from, u_to):
        d = (slot_of(u_to) - slot_of(u_from)) * SLOT
        def f():
            for r in regs:
                if d >= 0: p(f"v_add_u32 v{r}, {d}, v{r}")
                else: p(f"v_subrev_u32 v{r}, {-d}, v{r}")
        return f
    def step_sync(us):
        def f():
            for u in us: p.wait_tag(("u", u))
            p.barrier()
        return f

    ops = []; fillers = {}
    xf_ctr = 0
    for i in range(9):
        base_op = len(ops)
        for s in range(4):
            xf = XF0 + 4 * (xf_ctr % NXF); xf_ctr += 1
            for db in range(4):
                reads = []; pre = []
                if s == 0 and db == 0:
                    pre.append(step_sync([2*i, 2*i+1]))
                    if i > 0:
                        pre.append(addr_shift(vXr, 2*i-2, 2*i)); pre.append(addr_shift(vWr, 2*i-1, 2*i+1))
                if db == 0: reads.append(f"ds_read_b128 {vr(xf,4)}, v{vXr[s]}")
                f = newfrag()
                reads.append(f"ds_read_b64_tr_b16 {vr(f,2)}, v{vWr[db]} offset:{(16*s)*256}")
                reads.append(f"ds_read_b64_tr_b16 {vr(f+2,2)}, v{vWr[db]} offset:{(16*s+4)*256}")
                acc = vr(vO + 16*db, 16)
                cin = "0" if (i == 0 and s == 0) else acc
                ops.append(Op(reads, [f"v_mfma_f32_32x32x16_bf16 {acc}, {vr(f,4)}, {vr(xf,4)}, {cin}"], pre))
        fl = dma_use(2*i+4) + dma_use(2*i+5)
        spread(fl, max(base_op - cfg.LA, 0) + (0 if i else 0), base_op + 16 - cfg.LA - 1, fillers)
    run_ops(ops, cfg.LA, fillers)
    stamp("p1end")
    for db in range(4):
        for t in range(2):
            for i in range(4):
                a = vO + 16*db + 8*t + 2*i
                p(f"v_cvt_pk_bf16_f32 v{vQ + (2*db+t)*4 + i}, v{a}, v{a+1}")
    if cfg.dbg_q:
        p(f"s_lshl_b32 s{sT0}, s2, 2"); p(f"s_add_u32 s{sT0}, s{sT0}, s{sW}"); p(f"s_lshl_b32 s{sT0}, s{sT0}, 13")
        p(f"s_add_u32 s{sT0}, s{sT0}, {WS_DBG}")
        p(f"v_lshlrev_b32 v{vT[0]}, 4, v{vLane}"); p(f"v_add_u32 v{vT[0]}, s{sT0}, v{vT[0]}")
        for s in range(8):
            p(f"global_store_dwordx4 v{vT[0]}, {vr(vQ+4*s,4)}, s[{sWS_}:{sWS_+1}] offset:{(s%4)*1024}")
            if s == 3: p(f"v_add_u32 v{vT[0]}, 4096, v{vT[0]}")
            if s >= 4: pass
    if cfg.stop_after == "p1":
        p.wait_all(); p("s_endpgm")
        return finish(p, cfg, stamp_names)

    issued = 21
    rescale_blocks = []
    wo_sched = {27: ("O", (0, [0,1,2,3,4])), 28: ("O", (0, [5,6,7,8])), 29: ("O", (1, [0,1,2,3,4])), 30: ("O", (1, [5,6,7,8])),
                31: ("O", (2, [0,1,2,3,4,5,6,7,8])), 33: ("O", (3, [0,1,2,3,4,5,6,7,8]))}
    def kv_issue(u):
        nonlocal issued
        fl = []
        while issued < min(u + cfg.D2, 33):
            issued += 1
            fl += dma_use(issued)
        return fl
    for t in range(8):
        uK, uV = 18 + 2*t, 19 + 2*t
        ops = []; fillers = {}
        for kb in range(2):
            for s in range(8):
                pre = []
                if kb == 0 and s == 0:
                    pre.append(step_sync([uK]))
                    if t > 0: pre.append(addr_shift(vKr, uK-2, uK))
                f = newfrag()
                acc = vr(vS + 16*kb, 16)
                ops.append(Op([f"ds_read_b128 {vr(f,4)}, v{vKr[s]} offset:{kb*8192}"],
                              [f"v_mfma_f32_32x32x16_bf16 {acc}, {vr(f,4)}, {vr(vQ+4*s,4)}, {'0' if s == 0 else acc}"], pre))
        spread(kv_issue(uK), 0, 8, fillers)
        run_ops(ops, cfg.LA + 2, fillers)
        p(f"v_max3_f32 v{vTm}, v{vS}, v{vS+1}, v{vS+2}")
        p(f"v_max3_f32 v{vTm2}, v{vS+3}, v{vS+4}, v{vS+5}")
        for i in range(6, 30, 4):
            p(f"v_max3_f32 v{vTm}, v{vTm}, v{vS+i}, v{vS+i+1}")
            p(f"v_max3_f32 v{vTm2}, v{vTm2}, v{vS+i+2}, v{vS+i+3}")
        p(f"v_max3_f32 v{vTm}, v{vTm}, v{vS+30}, v{vS+31}")
        p(f"v_max_f32 v{vTm}, v{vTm}, v{vTm2}")
        p(f"v_mov_b32 v{vTm2}, v{vTm}")
        p(f"v_permlane32_swap_b32 v{vTm}, v{vTm2}")
        p(f"v_max_f32 v{vTm}, v{vTm}, v{vTm2}")
        if t == 0:
            p(f"v_mov_b32 v{vM}, v{vTm}")
            p(f"v_add_f32 v{vMT}, s{sTC}, v{vTm}")
            p(f"v_mul_f32 v{vNeg}, s{sCC}, v{vTm}")
            p(f"v_sub_f32 v{vNeg}, 0, v{vNeg}")
        else:
            lab = f"L_resc_{t}"
            p(f"v_cmp_gt_f32 vcc, v{vTm}, v{vMT}")
            p.nop(4)
            p(f"s_cbranch_vccnz {lab}")
            p(f"{lab}_back:")
            rescale_blocks.append(lab)
        for i in range(0, 32, 2):
            p(f"v_pk_fma_f32 {vr(vS+i,2)}, {vr(vS+i,2)}, s[{sCC}:{sCC+1}], {vr(vNeg,2)} op_sel_hi:[1,1,0]")
        for i in range(32):
            p(f"v_exp_f32 v{vS+i}, v{vS+i}")
        for i in range(0, 32, 4):
            if t == 0 and i == 0:
                p(f"v_mov_b32 v{vL0}, v{vS}"); p(f"v_mov_b32 v{vL0+1}, v{vS+1}")
                p(f"v_mov_b32 v{vL1}, v{vS+2}"); p(f"v_mov_b32 v{vL1+1}, v{vS+3}")
            else:
                p(f"v_pk_add_f32 {vr(vL0,2)}, {vr(vL0,2)}, {vr(vS+i,2)}")
                p(f"v_pk_add_f32 {vr(vL1,2)}, {vr(vL1,2)}, {vr(vS+i+2,2)}")
        for i in range(16):
            p(f"v_cvt_pk_bf16_f32 v{vP+i}, v{vS+2*i}, v{vS+2*i+1}")
        if uK in wo_sched:
            for f in dma_group("O", None, wo_sched[uK][1]): f()
        ops = []; fillers = {}
        first = True
        for kb in range(2):
            for tt in range(2):
                for db in range(4):
                    pre = []
                    if first:
                        pre.append(step_sync([uV]))
                        if t > 0: pre.append(addr_shift(vVr, uV-2, uV))
                        first = False
                    f = newfrag()
                    row = 32*kb + 16*tt
                    acc = vr(vO + 16*db, 16)
                    cin = "0" if (t == 0 and kb == 0 and tt == 0) else acc
                    ops.append(Op([f"ds_read_b64_tr_b16 {vr(f,2)}, v{vVr[db]} offset:{row*256}",
                                   f"ds_read_b64_tr_b16 {vr(f+2,2)}, v{vVr[db]} offset:{(row+8)*256}"],
                                  [f"v_mfma_f32_32x32x16_bf16 {acc}, {vr(f,4)}, {vr(vP + kb*8 + tt*4, 4)}, {cin}"], pre))
        spread(kv_issue(uV), 0, 8, fillers)
        run_ops(ops, cfg.LA, fillers)
        if uV in wo_sched and uV != 33:
            for f in dma_group("O", None, wo_sched[uV][1]): f()
        if uV == 25:
            p(f"v_mov_b32 v{vT[0]}, 0")
            p(f"global_load_dword v{vT[1]}, v{vT[0]}, s[{sDBG_}:{sDBG_+1}] sc0 sc1", tag="noncel")
    stamp("p2end")
    p(f"v_pk_add_f32 {vr(vL0,2)}, {vr(vL0,2)}, {vr(vL1,2)}")
    p(f"v_add_f32 v{vL0}, v{vL0}, v{vL0+1}")
    p(f"v_mov_b32 v{vL1}, v{vL0}")
    p(f"v_permlane32_swap_b32 v{vL0}, v{vL1}")
    p(f"v_add_f32 v{vL0}, v{vL0}, v{vL1}")
    p(f"v_rcp_f32 v{vL0}, v{vL0}")
    p(f"v_bfe_u32 v{vT[2]}, v{vLane}, 4, 1"); p(f"v_lshlrev_b32 v{vT[2]}, 14, v{vT[2]}")
    p(f"v_lshrrev_b32 v{vT[3]}, 5, v{vLane}"); p(f"v_lshlrev_b32 v{vT[3]}, 8, v{vT[3]}"); p(f"v_add_u32 v{vT[2]}, v{vT[2]}, v{vT[3]}")
    p(f"v_and_b32 v{vT[3]}, 15, v{vLane}"); p(f"v_lshlrev_b32 v{vT[3]}, 4, v{vT[3]}"); p(f"v_add_u32 v{vT[2]}, v{vT[2]}, v{vT[3]}")
    p(f"s_lshl_b32 s{sT0}, s{sJ}, 12")
    p(f"v_mov_b32 v{vL0+1}, v{vL0}")
    for db in range(4):
        for i in range(0, 16, 2):
            a = vO + 16*db + i
            p(f"v_pk_mul_f32 {vr(a,2)}, {vr(a,2)}, {vr(vL0,2)}")
        for t in range(2):
            for i in range(4):
                a = vO + 16*db + 8*t + 2*i
                p(f"v_cvt_pk_bf16_f32 v{vS + db*8 + t*4 + i}, v{a}, v{a+1}")
            p(f"buffer_store_dwordx4 {vr(vS + db*8 + t*4, 4)}, v{vT[2]}, {srd(SRD_O)}, s{sT0} offen offset:{db*1024 + t*512} {cfg.st}", tag="ost")
    p(f"v_readfirstlane_b32 s{sNonce}, v{vT[1]}")
    spin = p.newlabel("L_nspin"); ok = p.newlabel("L_nok")
    p(f"s_cmp_lg_u32 s{sNonce}, 0")
    p(f"s_cbranch_scc1 {ok}")
    snap = p.snapshot()
    p(f"s_mov_b32 s{sCnt}, 0")
    p.wait_all()
    p(f"{spin}:")
    p(f"global_load_dword v{vT[1]}, v{vT[0]}, s[{sDBG_}:{sDBG_+1}] sc0 sc1")
    p.wait_vm(0)
    p(f"v_readfirstlane_b32 s{sNonce}, v{vT[1]}")
    p(f"s_add_u32 s{sCnt}, s{sCnt}, 1")
    p(f"s_cmp_gt_u32 s{sCnt}, 0x10000")
    p(f"s_cbranch_scc1 {ok}")
    p(f"s_cmp_eq_u32 s{sNonce}, 0")
    p(f"s_cbranch_scc1 {spin}")
    p(f"{ok}:")
    p.restore(snap)
    for f in dma_group("O", None, wo_sched[33][1]): f()
    p(f"s_lshl_b32 s{sT0}, s{sB}, 3"); p(f"s_add_u32 s{sT0}, s{sT0}, s{sXC}"); p(f"s_lshl_b32 s{sT0}, s{sT0}, 2")
    p(f"s_add_u32 s{sT0}, s{sT0}, s{sW}"); p(f"s_lshl_b32 s{sT0}, s{sT0}, 6"); p(f"s_add_u32 s{sT0}, s{sT0}, {WS_F1}")
    p(f"s_lshl_b32 s{sT3}, s{sJ}, 2")
    p(f"v_mov_b32 v{vT[4]}, s{sT0}")
    p(f"v_add_u32 v{vT[5]}, s{sT3}, v{vT[4]}")
    p(f"v_mov_b32 v{vT[6]}, s{sNonce}")
    p.wait_tag("ost")
    p(f"global_store_dword v{vT[5]}, v{vT[6]}, s[{sWS_}:{sWS_+1}] {cfg.st}", tag="f1")
    stamp("flag1")
    if cfg.stop_after == "p2":
        p.wait_all(); p("s_endpgm")
        return finish(p, cfg, stamp_names, rescale_blocks)

    p(f"v_lshlrev_b32 v{vT[2]}, 4, v{vLane}")
    def load_o(pos):
        p(f"s_add_u32 s{sT3}, s{sJ}, {pos}"); p(f"s_and_b32 s{sT3}, s{sT3}, 3"); p(f"s_lshl_b32 s{sT3}, s{sT3}, 12")
        p(f"s_add_u32 s{sT2}, s{sT3}, 16384")
        for db in range(4):
            for qb in range(2):
                a = ((pos*4+db)*2+qb)*4
                p(f"buffer_load_dwordx4 {ar(a,4)}, v{vT[2]}, {srd(SRD_O)}, s{sT3 if qb == 0 else sT2} offen offset:{db*1024} {cfg.ld}", tag=("of", pos))
    load_o(0)
    p(f"v_lshrrev_b32 v{vT[3]}, 5, v{vLane}"); p(f"v_lshlrev_b32 v{vT[3]}, 4, v{vT[3]}")
    p(f"v_bfe_u32 v{vT[5]}, v{vLane}, 4, 1"); p(f"v_lshlrev_b32 v{vT[5]}, 2, v{vT[5]}"); p(f"v_add_u32 v{vT[3]}, v{vT[3]}, v{vT[5]}")
    p(f"v_bfe_u32 v{vT[5]}, v{vLane}, 2, 2"); p(f"v_add_u32 v{vT[3]}, v{vT[3]}, v{vT[5]}")
    p(f"v_mul_u32_u24 v{vT[3]}, 288, v{vT[3]}")
    p(f"v_and_b32 v{vT[5]}, 3, v{vLane}"); p(f"v_lshlrev_b32 v{vT[5]}, 3, v{vT[5]}"); p(f"v_add_u32 v{vVr[0]}, v{vT[3]}, v{vT[5]}")
    for pos in range(1, 4):
        p(f"v_add_u32 v{vVr[pos]}, {36864*pos}, v{vVr[0]}")
    spin = p.newlabel("L_f1spin"); ok = p.newlabel("L_f1ok")
    p(f"s_mov_b32 s{sCnt}, 0")
    p(f"{spin}:")
    p(f"global_load_dwordx4 {vr(FR0,4)}, v{vT[4]}, s[{sWS_}:{sWS_+1}] {cfg.ld}")
    p.wait_vm(0)
    p(f"v_xor_b32 v{FR0}, s{sNonce}, v{FR0}"); p(f"v_xor_b32 v{FR0+1}, s{sNonce}, v{FR0+1}")
    p(f"v_xor_b32 v{FR0+2}, s{sNonce}, v{FR0+2}"); p(f"v_xor_b32 v{FR0+3}, s{sNonce}, v{FR0+3}")
    p(f"v_or_b32 v{FR0}, v{FR0}, v{FR0+1}"); p(f"v_or_b32 v{FR0+2}, v{FR0+2}, v{FR0+3}"); p(f"v_or_b32 v{FR0}, v{FR0}, v{FR0+2}")
    p(f"v_readfirstlane_b32 s{sT0}, v{FR0}")
    p(f"s_add_u32 s{sCnt}, s{sCnt}, 1")
    p(f"s_cmp_gt_u32 s{sCnt}, 0x10000")
    p(f"s_cbranch_scc1 {ok}")
    p(f"s_cmp_lg_u32 s{sT0}, 0")
    p(f"s_cbranch_scc1 {spin}")
    p(f"{ok}:")
    for pos in range(1, 4): load_o(pos)
    stamp("f1seen")
    p.barrier()
    ops = []
    for pos in range(4):
        for db in range(4):
            for nb in range(9):
                f = newfrag()
                off = (32*db)*288 + 32*nb
                m = []
                for qb in range(2):
                    acc = vr(vACC + (qb*9+nb)*4, 4)
                    cin = "0" if (pos == 0 and db == 0) else acc
                    a = ((pos*4+db)*2+qb)*4
                    m.append(f"v_mfma_f32_16x16x32_bf16 {acc}, {vr(f,4)}, {ar(a,4)}, {cin}")
                ops.append(Op([f"ds_read_b64_tr_b16 {vr(f,2)}, v{vVr[pos]} offset:{off}",
                               f"ds_read_b64_tr_b16 {vr(f+2,2)}, v{vVr[pos]} offset:{off + 8*288}"], m))
    run_ops(ops, 5)
    stamp("gemm")
    PB = 9216 if cfg.fp32_partials else 4608
    p(f"s_lshl_b32 s{sT0}, s{sB}, 2"); p(f"s_add_u32 s{sT0}, s{sT0}, s{sJ}"); p(f"s_lshl_b32 s{sT0}, s{sT0}, 6")
    p(f"s_mul_i32 s{sT0}, s{sT0}, {PB}")
    p(f"s_add_u32 s{sT0}, s{sT0}, {WS_P}")
    p(f"s_add_u32 s{SRD_P}, s{sWS_}, s{sT0}"); p(f"s_addc_u32 s{SRD_P+1}, s{sWS_+1}, 0"); p(f"s_mov_b32 s{SRD_P+2}, {64*PB}"); p(f"s_mov_b32 s{SRD_P+3}, 0x20000")
    p(f"s_lshl_b32 s{sT1}, s{sW}, 4"); p(f"s_add_u32 s{sT1}, s{sT1}, s{sXC}"); p(f"s_mul_i32 s{sT1}, s{sT1}, {PB}")
    p(f"s_add_u32 s{sT2}, s{sT1}, {8*PB}")
    p(f"v_lshlrev_b32 v{vT[2]}, 4, v{vLane}"); p(f"v_lshlrev_b32 v{vT[3]}, 3, v{vLane}")
    for qb in range(2):
        so = sT1 if qb == 0 else sT2
        if cfg.fp32_partials:
            for nb in range(9):
                if nb == 4: p(f"s_add_u32 s{so}, s{so}, 4096")
                if nb == 8: p(f"s_add_u32 s{so}, s{so}, 4096")
                p(f"buffer_store_dwordx4 {vr(vACC+(qb*9+nb)*4,4)}, v{vT[2]}, {srd(SRD_P)}, s{so} offen offset:{(nb%4)*1024} {cfg.st}", tag="pst")
        else:
            for nb in range(9):
                a = vACC + (qb*9+nb)*4
                p(f"v_cvt_pk_bf16_f32 v{vPK+qb*18+2*nb}, v{a}, v{a+1}")
                p(f"v_cvt_pk_bf16_f32 v{vPK+qb*18+2*nb+1}, v{a+2}, v{a+3}")
                if nb % 2 == 1:
                    p(f"buffer_store_dwordx4 {vr(vPK+qb*18+2*(nb-1),4)}, v{vT[2]}, {srd(SRD_P)}, s{so} offen offset:{(nb//2)*1024} {cfg.st}", tag="pst")
            p(f"s_add_u32 s{sT0}, s{so}, 4096")
            p(f"buffer_store_dwordx2 {vr(vPK+qb*18+16,2)}, v{vT[3]}, {srd(SRD_P)}, s{sT0} offen {cfg.st}", tag="pst")
    p(f"s_lshl_b32 s{sT0}, s{sB}, 2"); p(f"s_add_u32 s{sT0}, s{sT0}, s{sJ}"); p(f"s_lshl_b32 s{sT0}, s{sT0}, 9"); p(f"s_add_u32 s{sT0}, s{sT0}, {WS_F2}")
    p(f"s_lshl_b32 s{sT1}, s{sW}, 7"); p(f"s_lshl_b32 s{sT2}, s{sXC}, 2"); p(f"s_add_u32 s{sT1}, s{sT1}, s{sT2}"); p(f"s_add_u32 s{sT1}, s{sT1}, s{sT0}")
    p(f"v_mov_b32 v{vT[5]}, s{sT1}"); p(f"v_mov_b32 v{vT[6]}, s{sNonce}")
    p.wait_tag("pst")
    p(f"global_store_dword v{vT[5]}, v{vT[6]}, s[{sWS_}:{sWS_+1}] {cfg.st}")
    p(f"global_store_dword v{vT[5]}, v{vT[6]}, s[{sWS_}:{sWS_+1}] offset:64 {cfg.st}")
    stamp("flag2")
    p(f"s_lshl_b32 s{sT1}, s{sXC}, 6"); p(f"s_add_u32 s{sT1}, s{sT1}, s{sT0}")
    p(f"v_mov_b32 v{vT[5]}, s{sT1}")
    spin = p.newlabel("L_f2spin"); ok = p.newlabel("L_f2ok")
    p(f"s_mov_b32 s{sCnt}, 0")
    p(f"{spin}:")
    p(f"global_load_dwordx4 {vr(FR0,4)}, v{vT[5]}, s[{sWS_}:{sWS_+1}] {cfg.ld}")
    p(f"global_load_dwordx4 {vr(FR0+4,4)}, v{vT[5]}, s[{sWS_}:{sWS_+1}] offset:16 {cfg.ld}")
    p.wait_vm(0)
    for i in range(8): p(f"v_xor_b32 v{FR0+i}, s{sNonce}, v{FR0+i}")
    for i in range(1, 8): p(f"v_or_b32 v{FR0}, v{FR0}, v{FR0+i}")
    p(f"v_readfirstlane_b32 s{sT2}, v{FR0}")
    p(f"s_add_u32 s{sCnt}, s{sCnt}, 1")
    p(f"s_cmp_gt_u32 s{sCnt}, 0x10000")
    p(f"s_cbranch_scc1 {ok}")
    p(f"s_cmp_lg_u32 s{sT2}, 0")
    p(f"s_cbranch_scc1 {spin}")
    p(f"{ok}:")
    stamp("f2seen")
    p(f"s_lshl_b32 s{sT0}, s{sB}, 7"); p(f"s_lshl_b32 s{sT1}, s{sXC}, 4"); p(f"s_add_u32 s{sT0}, s{sT0}, s{sT1}"); p(f"s_mul_i32 s{sT0}, s{sT0}, 1152")
    p(f"s_mul_i32 s{sT1}, s{sJ}, 288"); p(f"s_add_u32 s{sT0}, s{sT0}, s{sT1}")
    p(f"s_add_u32 s{SRD_OUT}, s{sOUT_}, s{sT0}"); p(f"s_addc_u32 s{SRD_OUT+1}, s{sOUT_+1}, 0")
    p(f"s_sub_u32 s{SRD_OUT+2}, 1179648, s{sT0}"); p(f"s_mov_b32 s{SRD_OUT+3}, 0x20000")
    p(f"v_and_b32 v{vT[4]}, 15, v{vLane}"); p(f"v_mul_u32_u24 v{vT[4]}, 1152, v{vT[4]}")
    p(f"v_lshrrev_b32 v{vT[5]}, 4, v{vLane}"); p(f"v_lshlrev_b32 v{vT[5]}, 3, v{vT[5]}"); p(f"v_add_u32 v{vT[4]}, v{vT[4]}, v{vT[5]}")
    p(f"s_mul_i32 s{sT0}, s{sXC}, {8*PB}")
    if not cfg.fp32_partials:
        p(f"s_lshl_b32 s{sT1}, s{sW}, 10"); p(f"s_add_u32 s{sT1}, s{sT1}, s{sT0}")
        for src in range(8):
            p(f"buffer_load_dwordx4 {vr(64+4*src,4)}, v{vT[2]}, {srd(SRD_P)}, s{sT1} offen {cfg.ld}")
            if src < 7: p(f"s_add_u32 s{sT1}, s{sT1}, {PB}")
        lab8 = p.newlabel("L_no8")
        def unpack_add(dst, srcreg, first):
            if first:
                p(f"v_lshlrev_b32 v{dst}, 16, v{srcreg}"); p(f"v_and_b32 v{dst+1}, 0xffff0000, v{srcreg}")
            else:
                p(f"v_lshlrev_b32 v{vT[6]}, 16, v{srcreg}"); p(f"v_add_f32 v{dst}, v{dst}, v{vT[6]}")
                p(f"v_and_b32 v{vT[7]}, 0xffff0000, v{srcreg}"); p(f"v_add_f32 v{dst+1}, v{dst+1}, v{vT[7]}")
        for src in range(8):
            for i in range(4): unpack_add(108 + 2*i, 64 + 4*src + i, src == 0)
        for i in range(4): p(f"v_cvt_pk_bf16_f32 v{120+i}, v{108+2*i}, v{108+2*i+1}")
        p(f"s_lshl_b32 s{sT1}, s{sW}, 6")
        p(f"buffer_store_dwordx2 {vr(120,2)}, v{vT[4]}, {srd(SRD_OUT)}, s{sT1} offen")
        p(f"buffer_store_dwordx2 {vr(122,2)}, v{vT[4]}, {srd(SRD_OUT)}, s{sT1} offen offset:32")
        p(f"s_cmp_lg_u32 s{sW}, 0")
        p(f"s_cbranch_scc1 {lab8}")
        p(f"s_add_u32 s{sT1}, s{sT0}, 4096")
        for src in range(8):
            p(f"buffer_load_dwordx2 {vr(64+2*src,2)}, v{vT[3]}, {srd(SRD_P)}, s{sT1} offen {cfg.ld}")
            if src < 7: p(f"s_add_u32 s{sT1}, s{sT1}, {PB}")
        for src in range(8):
            for i in range(2): unpack_add(108 + 2*i, 64 + 2*src + i, src == 0)
        for i in range(2): p(f"v_cvt_pk_bf16_f32 v{124+i}, v{108+2*i}, v{108+2*i+1}")
        p(f"buffer_store_dwordx2 {vr(124,2)}, v{vT[4]}, {srd(SRD_OUT)}, 0 offen offset:256")
        p(f"{lab8}:")
    else:
        for rnd in range(2):
            p(f"s_lshl_b32 s{sT1}, s{sW}, 10"); p(f"s_add_u32 s{sT1}, s{sT1}, s{sT0}")
            if rnd: p(f"s_add_u32 s{sT1}, s{sT1}, 4096")
            for src in range(8):
                p(f"buffer_load_dwordx4 {vr(64+32*rnd+4*src,4)}, v{vT[2]}, {srd(SRD_P)}, s{sT1} offen {cfg.ld}")
                if src < 7: p(f"s_add_u32 s{sT1}, s{sT1}, {PB}")
        for rnd in range(2):
            b0 = 64 + 32*rnd
            for src in range(1, 8):
                p(f"v_pk_add_f32 {vr(b0,2)}, {vr(b0,2)}, {vr(b0+4*src,2)}"); p(f"v_pk_add_f32 {vr(b0+2,2)}, {vr(b0+2,2)}, {vr(b0+4*src+2,2)}")
            p(f"v_cvt_pk_bf16_f32 v{b0}, v{b0}, v{b0+1}"); p(f"v_cvt_pk_bf16_f32 v{b0+1}, v{b0+2}, v{b0+3}")
            p(f"s_lshl_b32 s{sT1}, s{sW}, 5")
            p(f"buffer_store_dwordx2 {vr(b0,2)}, v{vT[4]}, {srd(SRD_OUT)}, s{sT1} offen offset:{128*rnd}")
        lab8 = p.newlabel("L_no8")
        p(f"s_cmp_lg_u32 s{sW}, 0")
        p(f"s_cbranch_scc1 {lab8}")
        p(f"s_add_u32 s{sT1}, s{sT0}, 8192")
        for src in range(8):
            p(f"buffer_load_dwordx4 {vr(128+4*src,4)}, v{vT[2]}, {srd(SRD_P)}, s{sT1} offen {cfg.ld}")
            if src < 7: p(f"s_add_u32 s{sT1}, s{sT1}, {PB}")
        b0 = 128
        for src in range(1, 8):
            p(f"v_pk_add_f32 {vr(b0,2)}, {vr(b0,2)}, {vr(b0+4*src,2)}"); p(f"v_pk_add_f32 {vr(b0+2,2)}, {vr(b0+2,2)}, {vr(b0+4*src+2,2)}")
        p(f"v_cvt_pk_bf16_f32 v{b0}, v{b0}, v{b0+1}"); p(f"v_cvt_pk_bf16_f32 v{b0+1}, v{b0+2}, v{b0+3}")
        p(f"buffer_store_dwordx2 {vr(b0,2)}, v{vT[4]}, {srd(SRD_OUT)}, 0 offen offset:256")
        p(f"{lab8}:")
    stamp("end")
    return finish(p, cfg, stamp_names, rescale_blocks)

def finish(p, cfg, stamp_names, rescale_blocks=()):
    if cfg.stamps and stamp_names:
        p.wait_all()
        lab = p.newlabel("L_nostamp")
        p(f"s_cmp_lg_u32 s{sW}, 0")
        p(f"s_cbranch_scc1 {lab}")
        p(f"s_lshl_b32 s{sT0}, s2, 6"); p(f"s_add_u32 s{sT0}, s{sT0}, {WS_DBG + 0x800000}")
        for i in range(len(stamp_names)):
            p(f"v_mov_b32 v{vT[0]}, s{sT0}"); p(f"v_mov_b32 v{vT[1]}, s{sStamp+2*i}")
            p(f"global_store_dword v{vT[0]}, v{vT[1]}, s[{sWS_}:{sWS_+1}] offset:{4*i}")
        p(f"{lab}:")
    p.raw("L_done:")
    p.raw("    s_endpgm")
    for lab in rescale_blocks:
        o = []
        o.append(f"{lab}:")
        o.append("    s_nop 7")
        o.append(f"    v_max_f32 v{vTm}, v{vTm}, v{vM}")
        o.append(f"    v_sub_f32 v{vTm2}, v{vM}, v{vTm}")
        o.append(f"    v_mul_f32 v{vTm2}, s{sCC}, v{vTm2}")
        o.append(f"    v_exp_f32 v{vTm2}, v{vTm2}")
        o.append(f"    v_mov_b32 v{vM}, v{vTm}")
        o.append(f"    v_add_f32 v{vMT}, s{sTC}, v{vTm}")
        o.append(f"    v_mul_f32 v{vNeg}, s{sCC}, v{vTm}")
        o.append(f"    v_sub_f32 v{vNeg}, 0, v{vNeg}")
        for r in (vL0, vL0+1, vL1, vL1+1): o.append(f"    v_mul_f32 v{r}, v{vTm2}, v{r}")
        for r in range(vO, vO+64): o.append(f"    v_mul_f32 v{r}, v{vTm2}, v{r}")
        o.append("    s_nop 3")
        o.append(f"    s_branch {lab}_back")
        for l in o: p.raw(l)
    head = HEADER_COMMENT + f"; @launch grid=(256,1,1) block=(256,1,1) lds={LDS_BYTES}\n"
    head += '.amdgcn_target "amdgcn-amd-amdhsa--gfx950"\n.text\n'
    head += f".globl {NAME}_kernel\n.p2align 8\n.type {NAME}_kernel,@function\n{NAME}_kernel:\n"
    tail = '.section .rodata,"a"\n.p2align 6\n' + f".amdhsa_kernel {NAME}_kernel\n"
    tail += "  .amdhsa_next_free_vgpr 512\n  .amdhsa_next_free_sgpr 102\n  .amdhsa_accum_offset 256\n"
    tail += "  .amdhsa_group_segment_fixed_size 0\n  .amdhsa_kernarg_size 64\n  .amdhsa_user_sgpr_count 2\n"
    tail += "  .amdhsa_user_sgpr_kernarg_segment_ptr 1\n  .amdhsa_system_sgpr_workgroup_id_x 1\n"
    tail += ".end_amdhsa_kernel\n"
    sys.stderr.write(f"instrs={p.ninstr} nops={p.nops} stamps={stamp_names}\n")
    return head + p.text() + tail

if __name__ == "__main__":
    import argparse
    ap = argparse.ArgumentParser()
    ap.add_argument("out")
    ap.add_argument("--set", action="append", default=[])
    a = ap.parse_args()
    cfg = Cfg()
    for kv in a.set:
        k, v = kv.split("=")
        if v in ("True", "False"): v = (v == "True")
        elif v == "None": v = None
        else:
            try: v = int(v)
            except ValueError:
                try: v = float(v)
                except ValueError: pass
        setattr(cfg, k, v)
    open(a.out, "w").write(gen(cfg))
```
